```python
import torch

def _softmax(x, axis=-1):
    return torch.softmax(x, dim=axis)
def _gelu(x):
    return torch.nn.functional.gelu(x, approximate="tanh")
def _silu(x):
    return torch.nn.functional.silu(x)
def _sigmoid(x):
    return torch.sigmoid(x)
def _layernorm(x, axis=-1, eps=1e-5):
    m = x.mean(dim=axis, keepdim=True)
    v = x.var(dim=axis, keepdim=True, unbiased=False)
    return (x - m) / torch.sqrt(v + eps)
def _scatter_add(tgt, idx, src, axis=0):
    return tgt.clone().index_add_(axis, idx, src)
def _segment_sum(src, seg, n):
    out = torch.zeros((n,) + src.shape[1:], dtype=src.dtype)
    return out.index_add_(0, seg, src)
def _pad(x, pw):
    flat = tuple(v for pair in reversed(pw) for v in pair)
    return torch.nn.functional.pad(x, flat)

kernel_name = 'standalone__instancenorm__sampling'

def setup_inputs():

    _w = (lambda a: (lambda t: t.to(torch.bfloat16) if t.is_floating_point() else t)(torch.as_tensor(a)))
    B, C, H, W = 16, 640, 16, 32
    return {
        "x": _w(abs((lambda *s: torch.randn(*s, dtype=torch.bfloat16) * 0.05)(B, C, H, W))),
        "g": _w((lambda *s: torch.randn(*s, dtype=torch.bfloat16) * 0.05)(C) + 1.0),
        "b": _w((lambda *s: torch.randn(*s, dtype=torch.bfloat16) * 0.4)(C)),
    }

def reference(x, g, b):
    mu = x.mean(axis=(-2, -1), keepdims=True)
    var = ((x - mu) ** 2).mean(axis=(-2, -1), keepdims=True)
    xhat = (x - mu) / torch.sqrt(var + 1e-5)
    return xhat * g.reshape(1, -1, 1, 1) + b.reshape(1, -1, 1, 1)
```

```python
import struct, sys, math

NAME = "standalone__instancenorm__sampling_kernel"
HDR = """; Kernarg layout for this problem (48 bytes, ptrs only, base s[0:1]):
; @launch grid=({grid},1,1) block=({block},1,1) lds=0
.amdgcn_target "amdgcn-amd-amdhsa--gfx950"
.text
.globl {name}
.p2align 8
.type {name},@function
{name}:
"""
FTR = """
.section .rodata,"a"
.p2align 6
.amdhsa_kernel {name}
  .amdhsa_next_free_vgpr {vgpr}
  .amdhsa_next_free_sgpr {sgpr}
  .amdhsa_accum_offset {acc}
  .amdhsa_group_segment_fixed_size 0
  .amdhsa_kernarg_size 48
  .amdhsa_user_sgpr_count 2
  .amdhsa_user_sgpr_kernarg_segment_ptr 1
  .amdhsa_system_sgpr_workgroup_id_x 1
  .amdhsa_float_denorm_mode_32 3
.end_amdhsa_kernel
"""

def f2u(f):
    return struct.unpack("<I", struct.pack("<f", f))[0]

def gen_row16(waves=4, ldf="", stf="", mode="unpack"):
    inst_per_wg = waves * 4
    nwg = 10240 // inst_per_wg
    assert 640 % inst_per_wg == 0
    wg_per_b = 640 // inst_per_wg
    magic = (1 << 20) // wg_per_b + 1
    for w in range(nwg + 16):
        assert (w * magic) >> 20 == w // wg_per_b, (w, magic)
    assert (nwg + 16) * magic < (1 << 32)
    L = []
    A = L.append
    A(f"s_load_dwordx8 s[4:11], s[0:1], 0")
    A(f"s_cmp_ge_u32 s2, {nwg}")
    A(f"s_cbranch_scc1 L_end")
    A(f"v_and_b32 v1, 15, v0")
    A(f"v_lshrrev_b32 v2, 4, v0")
    A(f"v_lshlrev_b32 v1, 4, v1")
    A(f"s_mul_i32 s3, s2, {inst_per_wg*1024}")
    A(f"v_lshl_add_u32 v1, v2, 10, v1")
    A(f"s_mul_i32 s12, s2, {magic}")
    A(f"v_add_u32 v1, s3, v1")
    A(f"s_lshr_b32 s12, s12, 20")
    A(f"s_mul_i32 s12, s12, {wg_per_b}")
    A(f"s_sub_u32 s12, s2, s12")
    A(f"s_mul_i32 s12, s12, {inst_per_wg*2}")
    A(f"v_lshl_add_u32 v3, v2, 1, s12")
    A(f"v_mov_b32 v20, 0")
    A(f"v_mov_b32 v21, 0")
    A(f"s_waitcnt lgkmcnt(0)")
    for j in range(4):
        A(f"global_load_dwordx4 v[{4+4*j}:{7+4*j}], v1, s[4:5] offset:{256*j} {ldf}")
    A(f"global_load_short_d16_hi v20, v3, s[6:7]")
    A(f"global_load_short_d16_hi v21, v3, s[8:9]")
    A(f"s_mov_b32 s13, 0x3f803f80")
    A(f"s_mov_b32 s14, 0x00003f80")
    A(f"s_mov_b32 s15, 0x3f800000")
    A(f"s_mov_b32 s16, 0xffff0000")
    A(f"v_mov_b32 v56, 0x{f2u(512*1e-5/16):08x}")
    A(f"v_mov_b32 v57, 0")
    if mode == "unpack":
        for j in range(4):
            A(f"s_waitcnt vmcnt({5-j})")
            for k in range(4):
                r = 4 + 4*j + k
                d = 24 + 2*(4*j+k)
                A(f"v_lshlrev_b32 v{d}, 16, v{r}")
                A(f"v_and_b32 v{d+1}, s16, v{r}")
            if j == 0:
                A(f"v_pk_add_f32 v[22:23], v[24:25], v[26:27]")
                A(f"v_pk_add_f32 v[58:59], v[28:29], v[30:31]")
            else:
                for k in range(4):
                    d = 24 + 2*(4*j+k)
                    acc = "v[22:23]" if k % 2 == 0 else "v[58:59]"
                    A(f"v_pk_add_f32 {acc}, {acc}, v[{d}:{d+1}]")
        A(f"v_pk_add_f32 v[22:23], v[22:23], v[58:59]")
        A(f"v_add_f32 v22, v22, v23")
    else:
        A(f"v_mov_b32 v22, 0")
        A(f"v_mov_b32 v23, 0")
        for j in range(4):
            A(f"s_waitcnt vmcnt({5-j})")
            for k in range(4):
                r = 4 + 4*j + k
                A(f"v_dot2c_f32_bf16 v{22 + (k%2)}, s13, v{r}")
        A(f"s_nop 2")
        A(f"v_add_f32 v22, v22, v23")
    for ror in (8, 4, 2, 1):
        A(f"s_nop 1")
        A(f"v_add_f32_dpp v22, v22, v22 row_ror:{ror} row_mask:0xf bank_mask:0xf")
    A(f"v_mul_f32 v22, 0x{f2u(-1.0/512):08x}, v22")
    if mode == "unpack":
        for i in range(16):
            d = 24 + 2*i
            A(f"v_pk_add_f32 v[{d}:{d+1}], v[{d}:{d+1}], v[22:23] op_sel_hi:[1,0]")
    else:
        for i in range(16):
            d = 24 + 2*i
            A(f"v_dot2_f32_bf16 v{d}, v{4+i}, s14, v22")
            A(f"v_dot2_f32_bf16 v{d+1}, v{4+i}, s15, v22")
        A(f"s_nop 2")
    for i in range(16):
        d = 24 + 2*i
        if i == 1:
            A(f"v_pk_mul_f32 v[58:59], v[{d}:{d+1}], v[{d}:{d+1}]")
        else:
            acc = "v[56:57]" if i % 2 == 0 else "v[58:59]"
            A(f"v_pk_fma_f32 {acc}, v[{d}:{d+1}], v[{d}:{d+1}], {acc}")
    A(f"v_pk_add_f32 v[56:57], v[56:57], v[58:59]")
    A(f"v_add_f32 v56, v56, v57")
    for ror in (8, 4, 2, 1):
        A(f"s_nop 1")
        A(f"v_add_f32_dpp v56, v56, v56 row_ror:{ror} row_mask:0xf bank_mask:0xf")
    A(f"v_rsq_f32 v56, v56")
    A(f"s_waitcnt vmcnt(0)")
    A(f"v_mul_f32 v20, 0x{f2u(math.sqrt(512.0)):08x}, v20")
    A(f"v_mul_f32 v20, v20, v56")
    for j in range(4):
        for k in range(4):
            i = 4*j + k
            d = 24 + 2*i
            A(f"v_pk_fma_f32 v[{d}:{d+1}], v[{d}:{d+1}], v[20:21], v[20:21] op_sel:[0,0,1] op_sel_hi:[1,0,1]")
        for k in range(4):
            i = 4*j + k
            d = 24 + 2*i
            A(f"v_cvt_pk_bf16_f32 v{4+i}, v{d}, v{d+1}")
        A(f"global_store_dwordx4 v1, v[{4+4*j}:{7+4*j}], s[10:11] offset:{256*j} {stf}")
    A(f"L_end:")
    A(f"s_endpgm")
    body = "\n".join(("    " + l if not l.endswith(":") else l) for l in L)
    return HDR.format(grid=nwg, block=waves*64, name=NAME) + body + FTR.format(name=NAME, vgpr=60, sgpr=24, acc=60)

if __name__ == "__main__":
    out = "var/"
    open(out + "r16_w4_unpack.s", "w").write(gen_row16(4, mode="unpack"))
    open(out + "r16_w4_dot.s", "w").write(gen_row16(4, mode="dot"))
```

```python
from gen import *
out = "var/"
open(out + "a1.s", "w").write(gen_row16(4, mode="dot"))
open(out + "a2.s", "w").write(gen_row16(1, mode="unpack"))
open(out + "a3.s", "w").write(gen_row16(16, mode="unpack"))
open(out + "a4.s", "w").write(gen_row16(4, mode="unpack", ldf="nt", stf="nt"))
open(out + "a5.s", "w").write(gen_row16(4, mode="unpack", ldf="", stf="sc0 sc1"))
open(out + "a6.s", "w").write(gen_row16(4, mode="unpack", ldf="", stf=""))
```

```python
from gen import *
import re
def add_diag(src):
    lines = src.split("\n")
    out = []
    seen_first_wait = False
    for l in lines:
        s = l.strip()
        if s.startswith("s_load_dwordx8 s[4:11]"):
            out.append("    s_memrealtime s[20:21]")
            out.append("    s_memtime s[22:23]")
            out.append(l)
            out.append("    s_load_dwordx2 s[34:35], s[0:1], 32")
            continue
        if s == "s_waitcnt lgkmcnt(0)" and not seen_first_wait:
            seen_first_wait = True
            out.append(l)
            out.append("    s_memrealtime s[24:25]")
            continue
        if s == "s_waitcnt vmcnt(5)":
            out.append(l); out.append("    s_memrealtime s[26:27]"); continue
        if s == "s_waitcnt vmcnt(2)":
            out.append(l); out.append("    s_memrealtime s[28:29]"); continue
        if s == "L_end:":
            out.append("    s_waitcnt vmcnt(0)")
            out.append("    s_memrealtime s[30:31]")
            out.append("    s_memtime s[32:33]")
            out.append("    s_waitcnt lgkmcnt(0)")
            for i, r in enumerate((20, 24, 26, 28, 30)):
                out.append(f"    s_not_b32 s36, s{r}")
                out.append(f"    v_writelane_b32 v2, s36, {2*i}")
                out.append(f"    v_writelane_b32 v2, s{r}, {2*i+1}")
            out.append("    s_sub_u32 s36, s32, s22")
            out.append("    v_writelane_b32 v2, s36, 10")
            out.append("    s_sub_u32 s36, s30, s20")
            out.append("    v_writelane_b32 v2, s36, 11")
            out.append("    s_sub_u32 s36, s24, s20")
            out.append("    v_writelane_b32 v2, s36, 12")
            out.append("    s_sub_u32 s36, s26, s24")
            out.append("    v_writelane_b32 v2, s36, 13")
            out.append("    s_sub_u32 s36, s28, s24")
            out.append("    v_writelane_b32 v2, s36, 14")
            out.append("    s_sub_u32 s36, s30, s28")
            out.append("    v_writelane_b32 v2, s36, 15")
            out.append("    v_and_b32 v3, 63, v0")
            out.append("    v_lshlrev_b32 v3, 2, v3")
            out.append("    s_mov_b64 exec, 0xffff")
            out.append("    global_atomic_umax v3, v2, s[34:35]")
            out.append(l)
            continue
        out.append(l)
    s = "\n".join(out)
    s = s.replace(".amdhsa_next_free_sgpr 24", ".amdhsa_next_free_sgpr 40")
    return s
if __name__ == "__main__":
    out = "var/"
    open(out + "d1.s", "w").write(add_diag(gen_row16(4, mode="unpack")))
    open(out + "d2.s", "w").write(add_diag(gen_row16(4, mode="unpack", ldf="nt", stf="nt")))
    open(out + "b1.s", "w").write(gen_row16(4, mode="unpack", ldf="nt", stf=""))
    open(out + "b2.s", "w").write(gen_row16(4, mode="unpack", ldf="", stf="nt"))
    open(out + "b3.s", "w").write(gen_row16(4, mode="unpack", ldf="sc1", stf="sc1"))
    open(out + "b4.s", "w").write(gen_row16(4, mode="unpack", ldf="sc0 sc1", stf=""))
```

```python
import struct, sys, math

NAME = "standalone__instancenorm__sampling_kernel"
HDR = """; Kernarg layout for this problem (48 bytes, ptrs only, base s[0:1]):
; @launch grid=({grid},1,1) block=({block},1,1) lds=0
.amdgcn_target "amdgcn-amd-amdhsa--gfx950"
.text
.globl {name}
.p2align 8
.type {name},@function
{name}:
"""
FTR = """
.section .rodata,"a"
.p2align 6
.amdhsa_kernel {name}
  .amdhsa_next_free_vgpr {vgpr}
  .amdhsa_next_free_sgpr {sgpr}
  .amdhsa_accum_offset {acc}
  .amdhsa_group_segment_fixed_size 0
  .amdhsa_kernarg_size 48
  .amdhsa_user_sgpr_count 2
  .amdhsa_user_sgpr_kernarg_segment_ptr 1
  .amdhsa_system_sgpr_workgroup_id_x 1
  .amdhsa_float_denorm_mode_32 3
.end_amdhsa_kernel
"""

def f2u(f):
    return struct.unpack("<I", struct.pack("<f", f))[0]

def gen_row16(waves=4, ldf="", stf="", mode="unpack"):
    inst_per_wg = waves * 4
    nwg = 10240 // inst_per_wg
    assert 640 % inst_per_wg == 0
    wg_per_b = 640 // inst_per_wg
    magic = (1 << 20) // wg_per_b + 1
    for w in range(nwg + 16):
        assert (w * magic) >> 20 == w // wg_per_b, (w, magic)
    assert (nwg + 16) * magic < (1 << 32)
    L = []
    A = L.append
    A(";@T0")
    A(f"s_load_dwordx8 s[4:11], s[0:1], 0")
    A(f"s_cmp_ge_u32 s2, {nwg}")
    A(f"s_cbranch_scc1 L_end")
    A(f"v_and_b32 v1, 15, v0")
    A(f"v_lshrrev_b32 v2, 4, v0")
    A(f"v_lshlrev_b32 v1, 4, v1")
    A(f"s_mul_i32 s3, s2, {inst_per_wg*1024}")
    A(f"v_lshl_add_u32 v1, v2, 10, v1")
    A(f"s_mul_i32 s12, s2, {magic}")
    A(f"v_add_u32 v1, s3, v1")
    A(f"s_lshr_b32 s12, s12, 20")
    A(f"s_mul_i32 s12, s12, {wg_per_b}")
    A(f"s_sub_u32 s12, s2, s12")
    A(f"s_mul_i32 s12, s12, {inst_per_wg*2}")
    A(f"v_lshl_add_u32 v3, v2, 1, s12")
    A(f"v_mov_b32 v20, 0")
    A(f"v_mov_b32 v21, 0")
    A(f"s_waitcnt lgkmcnt(0)")
    A(";@T1")
    for j in range(4):
        A(f"global_load_dwordx4 v[{4+4*j}:{7+4*j}], v1, s[4:5] offset:{256*j} {ldf}")
    A(f"global_load_short_d16_hi v20, v3, s[6:7]")
    A(f"global_load_short_d16_hi v21, v3, s[8:9]")
    A(f"s_mov_b32 s13, 0x3f803f80")
    A(f"s_mov_b32 s14, 0x00003f80")
    A(f"s_mov_b32 s15, 0x3f800000")
    A(f"s_mov_b32 s16, 0xffff0000")
    A(f"v_mov_b32 v56, 0x{f2u(512*1e-5/16):08x}")
    A(f"v_mov_b32 v57, 0")
    if mode == "unpack":
        for j in range(4):
            A(f"s_waitcnt vmcnt({5-j})")
            if j == 0: A(";@T2")
            if j == 3: A(";@T3")
            for k in range(4):
                r = 4 + 4*j + k
                d = 24 + 2*(4*j+k)
                A(f"v_lshlrev_b32 v{d}, 16, v{r}")
                A(f"v_and_b32 v{d+1}, s16, v{r}")
            if j == 0:
                A(f"v_pk_add_f32 v[22:23], v[24:25], v[26:27]")
                A(f"v_pk_add_f32 v[58:59], v[28:29], v[30:31]")
            else:
                for k in range(4):
                    d = 24 + 2*(4*j+k)
                    acc = "v[22:23]" if k % 2 == 0 else "v[58:59]"
                    A(f"v_pk_add_f32 {acc}, {acc}, v[{d}:{d+1}]")
        A(f"v_pk_add_f32 v[22:23], v[22:23], v[58:59]")
        A(f"v_add_f32 v22, v22, v23")
    else:
        A(f"v_mov_b32 v22, 0")
        A(f"v_mov_b32 v23, 0")
        for j in range(4):
            A(f"s_waitcnt vmcnt({5-j})")
            if j == 0: A(";@T2")
            if j == 3: A(";@T3")
            for k in range(4):
                r = 4 + 4*j + k
                A(f"v_dot2c_f32_bf16 v{22 + (k%2)}, s13, v{r}")
        A(f"s_nop 2")
        A(f"v_add_f32 v22, v22, v23")
    for ror in (8, 4, 2, 1):
        A(f"s_nop 1")
        A(f"v_add_f32_dpp v22, v22, v22 row_ror:{ror} row_mask:0xf bank_mask:0xf")
    A(f"v_mul_f32 v22, 0x{f2u(-1.0/512):08x}, v22")
    if mode == "unpack":
        for i in range(16):
            d = 24 + 2*i
            A(f"v_pk_add_f32 v[{d}:{d+1}], v[{d}:{d+1}], v[22:23] op_sel_hi:[1,0]")
    else:
        for i in range(16):
            d = 24 + 2*i
            A(f"v_dot2_f32_bf16 v{d}, v{4+i}, s14, v22")
            A(f"v_dot2_f32_bf16 v{d+1}, v{4+i}, s15, v22")
        A(f"s_nop 2")
    for i in range(16):
        d = 24 + 2*i
        if i == 1:
            A(f"v_pk_mul_f32 v[58:59], v[{d}:{d+1}], v[{d}:{d+1}]")
        else:
            acc = "v[56:57]" if i % 2 == 0 else "v[58:59]"
            A(f"v_pk_fma_f32 {acc}, v[{d}:{d+1}], v[{d}:{d+1}], {acc}")
    A(f"v_pk_add_f32 v[56:57], v[56:57], v[58:59]")
    A(f"v_add_f32 v56, v56, v57")
    for ror in (8, 4, 2, 1):
        A(f"s_nop 1")
        A(f"v_add_f32_dpp v56, v56, v56 row_ror:{ror} row_mask:0xf bank_mask:0xf")
    A(f"v_rsq_f32 v56, v56")
    A(f"s_waitcnt vmcnt(0)")
    A(f"v_mul_f32 v20, 0x{f2u(math.sqrt(512.0)):08x}, v20")
    A(f"v_mul_f32 v20, v20, v56")
    for j in range(4):
        for k in range(4):
            i = 4*j + k
            d = 24 + 2*i
            A(f"v_pk_fma_f32 v[{d}:{d+1}], v[{d}:{d+1}], v[20:21], v[20:21] op_sel:[0,0,1] op_sel_hi:[1,0,1]")
        for k in range(4):
            i = 4*j + k
            d = 24 + 2*i
            A(f"v_cvt_pk_bf16_f32 v{4+i}, v{d}, v{d+1}")
        A(f"global_store_dwordx4 v1, v[{4+4*j}:{7+4*j}], s[10:11] offset:{256*j} {stf}")
    A(";@T4")
    A(";@DUMP")
    A(f"L_end:")
    A(f"s_endpgm")
    body = "\n".join(("    " + l if not l.endswith(":") else l) for l in L)
    return HDR.format(grid=nwg, block=waves*64, name=NAME) + body + FTR.format(name=NAME, vgpr=60, sgpr=24, acc=60)

if __name__ == "__main__":
    out = "var/"
    open(out + "r16_w4_unpack.s", "w").write(gen_row16(4, mode="unpack"))
    open(out + "r16_w4_dot.s", "w").write(gen_row16(4, mode="dot"))
```

```python
from gen import HDR, FTR, NAME
base = open("f_w4.s").read()
body = base.split("standalone__instancenorm__sampling_kernel:\n")[1].split('.section .rodata')[0]
def wsbody(rd_off, wr_off, lab, nost=False):
    b = body.replace("L_end", lab)
    b = b.replace("    s_load_dwordx8 s[4:11], s[0:1], 0\n", "    s_load_dwordx8 s[4:11], s[0:1], 0\n    s_load_dwordx2 s[14:15], s[0:1], 40\n")
    b = b.replace("    s_waitcnt lgkmcnt(0)\n", f"""    s_waitcnt lgkmcnt(0)
    s_add_u32 s4, s14, {rd_off}
    s_addc_u32 s5, s15, 0
    s_add_u32 s10, s14, {wr_off}
    s_addc_u32 s11, s15, 0
""", 1)
    if nost:
        b = "\n".join(l for l in b.split("\n") if "global_store" not in l)
    return b
def two(b):
    s = base.replace("; @launch grid=(1280,1,1) block=(256,1,1) lds=0",
        "; @launch kernel=pre_kernel grid=(1280,1,1) block=(256,1,1) lds=0\n; @launch kernel=standalone__instancenorm__sampling_kernel grid=(1280,1,1) block=(256,1,1) lds=0")
    s = s.replace('.section .rodata,"a"', ".globl pre_kernel\n.p2align 8\n.type pre_kernel,@function\npre_kernel:\n" + b + '.section .rodata,"a"')
    s = s.rstrip() + "\n" + FTR.format(name="pre_kernel", vgpr=36, sgpr=24, acc=36).replace('.section .rodata,"a"\n', "")
    return s
def one(b):
    return HDR.format(grid=1280, block=256, name=NAME) + b + FTR.format(name=NAME, vgpr=36, sgpr=24, acc=36)
open("pd_cp.s", "w").write(two(wsbody(32<<20, 96<<20, "L_end2")))
open("pd_rd.s", "w").write(two(wsbody(32<<20, 96<<20, "L_end2", True)))
open("pe_cp.s", "w").write(one(wsbody(32<<20, 96<<20, "L_end2")))
open("pe_rd.s", "w").write(one(wsbody(32<<20, 96<<20, "L_end2", True)))
s = base.replace("; @launch grid=(1280,1,1) block=(256,1,1) lds=0",
        "; @launch kernel=standalone__instancenorm__sampling_kernel grid=(1280,1,1) block=(256,1,1) lds=0\n; @launch kernel=standalone__instancenorm__sampling_kernel grid=(1280,1,1) block=(256,1,1) lds=0")
open("pd_2x.s", "w").write(s)
```

```python
import math
from gen import HDR, FTR, NAME, f2u

def gen(waves=10, ldf="", stf="", unpack="shl", gbfirst=False):
    ipw = waves * 2
    nwg = 10240 // ipw
    wpb = 640 // ipw
    assert wpb * ipw == 640
    L = []
    A = L.append
    A(";@T0")
    A(f"s_load_dwordx8 s[4:11], s[0:1], 0")
    A(f"s_cmpk_ge_u32 s2, {nwg}")
    A(f"s_cbranch_scc1 L_end")
    A(f"v_and_b32 v2, -32, v0") if False else A(f"v_and_b32 v2, 0x3e0, v0")
    A(f"s_mul_i32 s3, s2, {ipw*1024}")
    A(f"v_add_lshl_u32 v1, v0, v2, 4")
    if wpb & (wpb - 1) == 0:
        A(f"s_and_b32 s12, s2, {wpb-1}")
    else:
        magic = (1 << 20) // wpb + 1
        for w in range(nwg + 16): assert (w * magic) >> 20 == w // wpb
        A(f"s_mul_i32 s12, s2, {magic}")
        A(f"s_lshr_b32 s12, s12, 20")
        A(f"s_mul_i32 s12, s12, {wpb}")
        A(f"s_sub_u32 s12, s2, s12")
    A(f"v_add_u32 v1, s3, v1")
    A(f"s_mul_i32 s12, s12, {ipw*2}")
    A(f"v_lshrrev_b32 v3, 4, v2")
    A(f"v_mov_b32 v12, 0")
    A(f"v_add_u32 v3, s12, v3")
    A(f"v_mov_b32 v13, 0")
    A(f"s_waitcnt lgkmcnt(0)")
    A(";@T1")
    def gb():
        A(f"global_load_short_d16_hi v12, v3, s[6:7]")
        A(f"global_load_short_d16_hi v13, v3, s[8:9]")
    if gbfirst: gb()
    for j in range(2):
        A(f"global_load_dwordx4 v[{4+4*j}:{7+4*j}], v1, s[4:5] offset:{512*j} {ldf}")
    if not gbfirst: gb()
    ex = 0 if gbfirst else 2
    A(f"v_mov_b32 v14, 0xffff0000")
    A(f"v_mov_b32 v34, 0x{f2u(512*1e-5/32):08x}")
    A(f"v_mov_b32 v35, 0")
    if unpack == "dot":
        A(f"s_mov_b32 s14, 0x00003f80")
        A(f"s_mov_b32 s15, 0x3f800000")
    for j in range(2):
        A(f"s_waitcnt vmcnt({1-j+ex})")
        if j == 0:
            A(";@T2")
            A(f"v_and_b32_dpp v15, v4, v14 row_newbcast:15 row_mask:0x5 bank_mask:0xf")
            A(f"v_and_b32_dpp v15, v4, v14 row_bcast:15 row_mask:0xa bank_mask:0xf")
        if j == 1: A(";@T3")
        if unpack == "shl":
            for k in range(4):
                r = 4 + 4*j + k
                d = 16 + 2*(4*j+k)
                A(f"v_lshlrev_b32 v{d}, 16, v{r}")
                A(f"v_and_b32 v{d+1}, v14, v{r}")
            for k in range(4):
                d = 16 + 2*(4*j+k)
                A(f"v_pk_add_f32 v[{d}:{d+1}], v[{d}:{d+1}], v[14:15] op_sel:[0,1] op_sel_hi:[1,1] neg_lo:[0,1] neg_hi:[0,1]")
        else:
            for k in range(4):
                r = 4 + 4*j + k
                d = 16 + 2*(4*j+k)
                A(f"v_dot2_f32_bf16 v{d}, v{r}, s14, v15 neg_lo:[0,0,1]")
                A(f"v_dot2_f32_bf16 v{d+1}, v{r}, s15, v15 neg_lo:[0,0,1]")
        for k in range(4):
            d = 16 + 2*(4*j+k)
            A(f"v_pk_fma_f32 v[34:35], v[{d}:{d+1}], v[{d}:{d+1}], v[34:35]")
            if j == 0 and k == 0: pass
            elif j == 0 and k == 1: A(f"v_pk_add_f32 v[32:33], v[16:17], v[18:19]")
            else: A(f"v_pk_add_f32 v[32:33], v[32:33], v[{d}:{d+1}]")
    A(f"v_add_f32 v34, v34, v35")
    A(f"v_add_f32 v32, v32, v33")
    A(f"s_waitcnt vmcnt(0)")
    A(f"v_mul_f32 v12, 0x{f2u(math.sqrt(512.0)):08x}, v12")
    A(f"s_nop 0")
    A(f"v_permlane16_swap_b32 v32, v34")
    A(f"v_add_f32 v32, v32, v34")
    for ror in (8, 4, 2):
        A(f"s_nop 1")
        A(f"v_add_f32_dpp v32, v32, v32 row_ror:{ror} row_mask:0xf bank_mask:0xf")
    A(f"s_nop 1")
    A(f"v_add_f32_dpp v34, v32, v32 row_ror:1 row_mask:0xf bank_mask:0xf")
    A(f"v_add_f32_dpp v32, v32, v32 row_ror:1 row_mask:0xf bank_mask:0xf")
    A(f"s_nop 1")
    A(f"v_permlane16_swap_b32 v32, v34")
    A(f"v_mul_f32 v33, 0x{f2u(-1.0/512):08x}, v32")
    A(f"v_fma_f32 v34, v33, v32, v34")
    A(f"v_max_f32 v34, 0x{f2u(512*1e-5):08x}, v34")
    A(f"v_rsq_f32 v34, v34")
    A(f"s_nop 0")
    A(f"v_mul_f32 v12, v12, v34")
    A(f"v_fma_f32 v13, v33, v12, v13")
    for j in range(2):
        for k in range(4):
            d = 16 + 2*(4*j+k)
            A(f"v_pk_fma_f32 v[{d}:{d+1}], v[{d}:{d+1}], v[12:13], v[12:13] op_sel:[0,0,1] op_sel_hi:[1,0,1]")
        for k in range(4):
            i = 4*j + k
            d = 16 + 2*i
            A(f"v_cvt_pk_bf16_f32 v{4+i}, v{d}, v{d+1}")
        A(f"global_store_dwordx4 v1, v[{4+4*j}:{7+4*j}], s[10:11] offset:{512*j} {stf}")
    A(";@T4")
    A(";@DUMP")
    A(f"L_end:")
    A(f"s_endpgm")
    body = "\n".join(("    " + l if not l.endswith(":") else l) for l in L if l)
    return HDR.format(grid=nwg, block=waves*64, name=NAME) + body + FTR.format(name=NAME, vgpr=36, sgpr=24, acc=36)

if __name__ == "__main__":
    from stamp import stamped
    out = "var/"
    for w in (4, 5, 8, 10, 16):
        v = gen(waves=w)
        open(out + f"h_w{w}.s", "w").write(v)
        open(out + f"hs_w{w}.s", "w").write(stamped(v, 5, w))
    v = gen(waves=10, unpack="dot")
    open(out + f"h_d10.s", "w").write(v)
    open(out + f"hs_d10.s", "w").write(stamped(v, 5, 10))
```

```python
import re
def stamped(src, nst, waves_per_wg):
    out = []
    for l in src.split("\n"):
        s = l.strip()
        m = re.match(r";@T(\d+)", s)
        if m:
            n = int(m.group(1))
            out.append(f"    s_memrealtime s[{60+2*n}:{61+2*n}]")
            if n == 0:
                out.append("    s_load_dwordx2 s[56:57], s[0:1], 40")
                out.append("    v_mov_b32 v63, v0")
                out.append("    s_mov_b32 s59, s2")
            continue
        if s == ";@DUMP":
            out.append("    s_waitcnt vmcnt(0)")
            out.append(f"    s_memrealtime s[{60+2*nst}:{61+2*nst}]")
            out.append("    s_getreg_b32 s58, hwreg(HW_REG_HW_ID)")
            out.append("    s_getreg_b32 s55, hwreg(HW_REG_XCC_ID)")
            out.append("    s_waitcnt lgkmcnt(0)")
            for i in range(nst + 1):
                out.append(f"    v_writelane_b32 v62, s{60+2*i}, {i}")
            out.append("    v_writelane_b32 v62, s58, 14")
            out.append("    v_writelane_b32 v62, s55, 15")
            out.append("    v_lshrrev_b32 v61, 6, v63")
            out.append(f"    s_mul_i32 s59, s59, {waves_per_wg}")
            out.append("    v_add_u32 v61, s59, v61")
            out.append("    v_lshlrev_b32 v61, 6, v61")
            out.append("    v_and_b32 v63, 63, v63")
            out.append("    v_lshl_add_u32 v61, v63, 2, v61")
            out.append("    s_mov_b64 exec, 0xffff")
            out.append("    global_store_dword v61, v62, s[56:57]")
            continue
        out.append(l)
    s = "\n".join(out)
    s = re.sub(r"\.amdhsa_next_free_sgpr \d+", ".amdhsa_next_free_sgpr 96", s)
    m = re.search(r"\.amdhsa_next_free_vgpr (\d+)", s)
    if int(m.group(1)) < 64:
        s = re.sub(r"\.amdhsa_next_free_vgpr \d+", ".amdhsa_next_free_vgpr 64", s)
        s = re.sub(r"\.amdhsa_accum_offset \d+", ".amdhsa_accum_offset 64", s)
    return s
```

```python
from gen5 import gen
L = {"p": "", "n": "nt", "s": "sc1", "z": "sc0 sc1 nt"}
S = {"p": "", "n": "nt", "s": "sc1", "w": "sc0 sc1", "z": "sc0 sc1 nt"}
for a, lf in L.items():
    for b, sf in S.items():
        v = gen(waves=4, ldf=lf, stf=sf)
        open(f"c_{a}{b}.s", "w").write("\n".join(l.rstrip() for l in v.split("\n") if not l.strip().startswith(";@")))
```

```python
from gen5 import gen
def strip(v): return "\n".join(l.rstrip() for l in v.split("\n") if not l.strip().startswith(";@"))
OLD = """    v_and_b32 v2, 0x3e0, v0
    s_mul_i32 s3, s2, 8192
    v_add_lshl_u32 v1, v0, v2, 4
    s_mul_i32 s12, s2, 13108
    s_lshr_b32 s12, s12, 20
    s_mul_i32 s12, s12, 80
    s_sub_u32 s12, s2, s12
    v_add_u32 v1, s3, v1
    s_mul_i32 s12, s12, 16
"""
def contig(ldf="", stf=""):
    v = gen(waves=4, ldf=ldf, stf=stf)
    new = """    v_and_b32 v2, 0x3e0, v0
    s_and_b32 s3, s2, 7
    s_lshr_b32 s12, s2, 3
    s_mulk_i32 s3, 160
    v_add_lshl_u32 v1, v0, v2, 4
    s_add_u32 s3, s3, s12
    s_lshl_b32 s3, s3, 13
    s_lshl_b32 s12, s12, 4
    s_sub_u32 s13, s12, 1280
    s_cselect_b32 s12, s12, s13
    v_add_u32 v1, s3, v1
"""
    assert OLD in v
    return v.replace(OLD, new)
if __name__ == "__main__":
    for n, (l, s) in {"pp": ("", ""), "pn": ("", "nt"), "sn": ("sc1", "nt")}.items():
        open(f"e_{n}.s", "w").write(strip(contig(l, s)))
```

```python
from gen5 import gen
from gen7 import strip
def pad(s, t=6):
    k = ".p2align 8\n.type standalone"
    p = (t - 2) * 0x400
    return s.replace(k, ".p2align 13\n" + (f".fill {p}, 4, 0xbf810000\n" if p else "") + k)
def gen8(lg, ldf="", stf="nt"):
    v = gen(waves=4, ldf=ldf, stf=stf)
    a = v.index("    v_and_b32 v2, 0x3e0, v0\n")
    b = v.index("    v_mov_b32 v14, 0xffff0000\n")
    for q in range(5120): assert (q * 3277) >> 20 == q // 320
    m = 1 << lg
    L = []
    A = L.append
    A("s_and_b32 s3, s2, 7")
    A("s_lshr_b32 s12, s2, 3")
    A("v_lshrrev_b32 v2, 6, v0")
    A(f"s_lshl_b32 s3, s3, {lg}")
    A("v_lshl_add_u32 v2, s12, 2, v2")
    A(f"v_and_b32 v3, {m-1}, v2")
    A(f"v_lshrrev_b32 v2, {lg}, v2")
    A("v_add_u32 v3, s3, v3")
    A(f"v_lshl_add_u32 v2, v2, {lg+3}, v3")
    A("v_and_b32 v3, 32, v0")
    A("v_and_b32 v1, 63, v0")
    A("v_add_lshl_u32 v1, v1, v3, 4")
    A("v_lshl_add_u32 v1, v2, 11, v1")
    A("s_waitcnt lgkmcnt(0)")
    A(";@T1")
    A(f"global_load_dwordx4 v[4:7], v1, s[4:5] offset:0 {ldf}")
    A(f"global_load_dwordx4 v[8:11], v1, s[4:5] offset:512 {ldf}")
    A("v_mul_u32_u24 v12, 3277, v2")
    A("v_lshrrev_b32 v12, 20, v12")
    A("v_mul_u32_u24 v12, 320, v12")
    A("v_sub_u32 v2, v2, v12")
    A("v_lshrrev_b32 v3, 4, v3")
    A("v_lshl_add_u32 v3, v2, 2, v3")
    A("v_mov_b32 v12, 0")
    A("v_mov_b32 v13, 0")
    A("global_load_short_d16_hi v12, v3, s[6:7]")
    A("global_load_short_d16_hi v13, v3, s[8:9]")
    return pad(v[:a] + "".join("    " + l + "\n" for l in L) + v[b:])
if __name__ == "__main__":
    for lg in range(8):
        open(f"i_{lg}.s", "w").write(strip(gen8(lg)))
```

```python
import gen5
from gen7 import strip
from gen8 import pad
from stamp import stamped
o = "var/"
def fence(v, thr=0, stf_early=None):
    v = v.replace("    s_waitcnt vmcnt(2)\n", "    s_waitcnt vmcnt(2)\n    global_load_ushort v36, v3, s[6:7]\n")
    v = v.replace("    s_waitcnt vmcnt(0)\n    v_mul_f32 v12", "    s_waitcnt vmcnt(1)\n    v_mul_f32 v12")
    lines = v.split("\n")
    st = [l for l in lines if "global_store_dwordx4" in l]
    lines = [l for l in lines if "global_store_dwordx4" not in l]
    i = next(k for k, l in enumerate(lines) if ";@T4" in l)
    pre = []
    if thr:
        pre = [f"    s_cmpk_lt_u32 s2, {thr}", "    s_cbranch_scc1 L_go", "    s_waitcnt vmcnt(0)", "L_go:"]
    else:
        pre = ["    s_waitcnt vmcnt(0)"]
    lines[i:i] = pre + st
    v = "\n".join(lines)
    return v.replace("next_free_vgpr 36", "next_free_vgpr 40").replace("accum_offset 36", "accum_offset 40")
def lateb(v):
    b = "    global_load_short_d16_hi v13, v3, s[8:9]\n"
    v = v.replace(b, "")
    v = v.replace("s_waitcnt vmcnt(3)", "s_waitcnt vmcnt(2)@").replace("    s_waitcnt vmcnt(2)\n", "    s_waitcnt vmcnt(1)\n" + b).replace("@", "")
    v = v.replace("    s_waitcnt vmcnt(0)\n    v_mul_f32 v12", "    s_waitcnt vmcnt(1)\n    v_mul_f32 v12")
    v = v.replace("    v_fma_f32 v13, v33, v12, v13\n", "    s_waitcnt vmcnt(0)\n    v_fma_f32 v13, v33, v12, v13\n")
    return v
for w, wg in ((4, 256), (5, 256)):
    base = gen5.gen(waves=w, stf="nt").replace(";@", ";%")
    base_ = lambda: gen5.gen(waves=w, stf="nt")
    for k in (0, 1, 2):
        open(o + f"f{w}_k{k}.s", "w").write(strip(pad(fence(base_(), thr=wg * k))))
    open(o + f"f{w}_lb.s", "w").write(strip(pad(lateb(base).replace(";%", ";@").replace("; launch", "; @launch").replace(",function", ",@function"))))
open(o + "fs4_k0.s", "w").write(pad(stamped(fence(gen5.gen(waves=4, stf="nt")), 5, 4)))
```

```python
import math
from gen import HDR, FTR, NAME, f2u

def gen(waves=4, ldf="", stA="", stB=None, cond=None, tail=None, stats="two"):
    inst_per_wg = waves * 4
    nwg = 10240 // inst_per_wg
    wg_per_b = 640 // inst_per_wg
    magic = (1 << 20) // wg_per_b + 1
    for w in range(nwg + 16):
        assert (w * magic) >> 20 == w // wg_per_b, (w, magic)
    L = []
    A = L.append
    A(";@T0")
    A(f"s_load_dwordx8 s[4:11], s[0:1], 0")
    A(f"s_cmp_ge_u32 s2, {nwg}")
    A(f"s_cbranch_scc1 L_end")
    A(f"v_and_b32 v1, 15, v0")
    A(f"v_lshrrev_b32 v2, 4, v0")
    A(f"v_lshlrev_b32 v1, 4, v1")
    A(f"s_mul_i32 s3, s2, {inst_per_wg*1024}")
    A(f"v_lshl_add_u32 v1, v2, 10, v1")
    A(f"s_mul_i32 s12, s2, {magic}")
    A(f"v_add_u32 v1, s3, v1")
    A(f"s_lshr_b32 s12, s12, 20")
    A(f"s_mul_i32 s12, s12, {wg_per_b}")
    A(f"s_sub_u32 s12, s2, s12")
    A(f"s_mul_i32 s12, s12, {inst_per_wg*2}")
    A(f"v_lshl_add_u32 v3, v2, 1, s12")
    A(f"v_mov_b32 v20, 0")
    A(f"v_mov_b32 v21, 0")
    A(f"s_waitcnt lgkmcnt(0)")
    A(";@T1")
    for j in range(4):
        A(f"global_load_dwordx4 v[{4+4*j}:{7+4*j}], v1, s[4:5] offset:{256*j} {ldf}")
    A(f"global_load_short_d16_hi v20, v3, s[6:7]")
    A(f"global_load_short_d16_hi v21, v3, s[8:9]")
    A(f"s_mov_b32 s16, 0xffff0000")
    if stats == "two":
        A(f"v_mov_b32 v56, 0x{f2u(512*1e-5/16):08x}")
        A(f"v_mov_b32 v57, 0")
        for j in range(4):
            A(f"s_waitcnt vmcnt({5-j})")
            if j == 0: A(";@T2")
            if j == 3: A(";@T3")
            for k in range(4):
                r = 4 + 4*j + k
                d = 24 + 2*(4*j+k)
                A(f"v_lshlrev_b32 v{d}, 16, v{r}")
                A(f"v_and_b32 v{d+1}, s16, v{r}")
            if j == 0:
                A(f"v_pk_add_f32 v[22:23], v[24:25], v[26:27]")
                A(f"v_pk_add_f32 v[58:59], v[28:29], v[30:31]")
            else:
                for k in range(4):
                    d = 24 + 2*(4*j+k)
                    acc = "v[22:23]" if k % 2 == 0 else "v[58:59]"
                    A(f"v_pk_add_f32 {acc}, {acc}, v[{d}:{d+1}]")
        A(f"v_pk_add_f32 v[22:23], v[22:23], v[58:59]")
        A(f"v_add_f32 v22, v22, v23")
        for ror in (8, 4, 2, 1):
            A(f"s_nop 1")
            A(f"v_add_f32_dpp v22, v22, v22 row_ror:{ror} row_mask:0xf bank_mask:0xf")
        A(f"v_mul_f32 v22, 0x{f2u(-1.0/512):08x}, v22")
        for i in range(16):
            d = 24 + 2*i
            A(f"v_pk_add_f32 v[{d}:{d+1}], v[{d}:{d+1}], v[22:23] op_sel_hi:[1,0]")
        for i in range(16):
            d = 24 + 2*i
            if i == 1:
                A(f"v_pk_mul_f32 v[58:59], v[{d}:{d+1}], v[{d}:{d+1}]")
            else:
                acc = "v[56:57]" if i % 2 == 0 else "v[58:59]"
                A(f"v_pk_fma_f32 {acc}, v[{d}:{d+1}], v[{d}:{d+1}], {acc}")
        A(f"v_pk_add_f32 v[56:57], v[56:57], v[58:59]")
        A(f"v_add_f32 v56, v56, v57")
        for ror in (8, 4, 2, 1):
            A(f"s_nop 1")
            A(f"v_add_f32_dpp v56, v56, v56 row_ror:{ror} row_mask:0xf bank_mask:0xf")
        A(f"v_rsq_f32 v56, v56")
        A(f"s_waitcnt vmcnt(0)")
        A(f"v_mul_f32 v20, 0x{f2u(math.sqrt(512.0)):08x}, v20")
        A(f"v_mul_f32 v20, v20, v56")
    elif stats == "shift":
        A(f"v_mov_b32 v56, 0x{f2u(512*1e-5/16):08x}")
        A(f"v_mov_b32 v57, 0")
        for j in range(4):
            A(f"s_waitcnt vmcnt({5-j})")
            if j == 0:
                A(";@T2")
                A(f"v_lshlrev_b32_dpp v58, v60, v4 row_newbcast:0 row_mask:0xf bank_mask:0xf") if False else None
                A(f"v_mov_b32_dpp v58, v4 row_newbcast:0 row_mask:0xf bank_mask:0xf")
            if j == 3: A(";@T3")
            for k in range(4):
                r = 4 + 4*j + k
                d = 24 + 2*(4*j+k)
                A(f"v_lshlrev_b32 v{d}, 16, v{r}")
                A(f"v_and_b32 v{d+1}, s16, v{r}")
                if j == 0 and k == 0:
                    A(f"v_and_b32 v58, s16, v58")
            for k in range(4):
                d = 24 + 2*(4*j+k)
                A(f"v_pk_add_f32 v[{d}:{d+1}], v[{d}:{d+1}], v[58:59] op_sel_hi:[1,0] neg_lo:[0,1] neg_hi:[0,1]")
            for k in range(4):
                d = 24 + 2*(4*j+k)
                if j == 0 and k == 0:
                    pass
                elif j == 0 and k == 1:
                    A(f"v_pk_add_f32 v[22:23], v[24:25], v[26:27]")
                else:
                    A(f"v_pk_add_f32 v[22:23], v[22:23], v[{d}:{d+1}]")
                A(f"v_pk_fma_f32 v[56:57], v[{d}:{d+1}], v[{d}:{d+1}], v[56:57]")
        A(f"v_add_f32 v22, v22, v23")
        A(f"v_add_f32 v56, v56, v57")
        for ror in (8, 4, 2, 1):
            A(f"s_nop 0")
            A(f"v_add_f32_dpp v22, v22, v22 row_ror:{ror} row_mask:0xf bank_mask:0xf")
            A(f"v_add_f32_dpp v56, v56, v56 row_ror:{ror} row_mask:0xf bank_mask:0xf")
        A(f"v_mul_f32 v23, 0x{f2u(-1.0/512):08x}, v22")
        A(f"v_fma_f32 v56, v23, v22, v56")
        A(f"v_max_f32 v56, 0x{f2u(512*1e-5):08x}, v56")
        A(f"v_rsq_f32 v56, v56")
        A(f"s_waitcnt vmcnt(0)")
        A(f"v_mul_f32 v20, 0x{f2u(math.sqrt(512.0)):08x}, v20")
        A(f"v_mul_f32 v20, v20, v56")
        A(f"v_fma_f32 v21, v23, v20, v21")
    def outpart(stf):
        for j in range(4):
            for k in range(4):
                i = 4*j + k
                d = 24 + 2*i
                A(f"v_pk_fma_f32 v[{d}:{d+1}], v[{d}:{d+1}], v[20:21], v[20:21] op_sel:[0,0,1] op_sel_hi:[1,0,1]")
            for k in range(4):
                i = 4*j + k
                d = 24 + 2*i
                A(f"v_cvt_pk_bf16_f32 v{4+i}, v{d}, v{d+1}")
            s = stf[j] if isinstance(stf, (list, tuple)) else stf
            A(f"global_store_dwordx4 v1, v[{4+4*j}:{7+4*j}], s[10:11] offset:{256*j} {s}")
    if stB is not None:
        for c in cond: A(c)
        A("s_cbranch_scc1 L_B")
        outpart(stA)
        A("s_branch L_join")
        A("L_B:")
        outpart(stB)
        A("L_join:")
    else:
        outpart(stA)
    if tail:
        for c in tail: A(c)
    A(";@T4")
    A(";@DUMP")
    A(f"L_end:")
    A(f"s_endpgm")
    body = "\n".join(("    " + l if not l.endswith(":") else l) for l in L if l)
    return HDR.format(grid=nwg, block=waves*64, name=NAME) + body + FTR.format(name=NAME, vgpr=60, sgpr=24, acc=60)

if __name__ == "__main__":
    from stamp import stamped
    out = "var/"
    V = {}
    V["base"] = gen()
    V["sh"] = gen(stats="shift")
    for f in (160, 320, 480):
        V[f"e{f}"] = gen(stB="sc0 sc1", cond=[f"s_cmp_lt_u32 s2, {f}"])
        V[f"l{f}"] = gen(stB="sc0 sc1", cond=[f"s_cmp_ge_u32 s2, {640-f}"])
    V["h2"] = gen(stA=["sc0 sc1", "sc0 sc1", "", ""])
    V["h1"] = gen(stA=["sc0 sc1", "", "", ""])
    V["sc1"] = gen(stA="sc1")
    V["sc0"] = gen(stA="sc0")
    for k, v in V.items():
        open(out + f"p_{k}.s", "w").write(v)
        open(out + f"ps_{k}.s", "w").write(stamped(v, 5, 4))
```

```python
import re, gen3
from gen7 import strip
from gen8 import pad
from stamp import stamped
def gen9(n, fence="own", waves=None):
    assert sum(n) == 320 and len(n) == 8
    waves = waves or (max(n) + 3) // 4
    v = gen3.gen(waves=10, stA="nt", stats="shift")
    v = v.replace("block=(640,1,1)", f"block=({waves*64},1,1)")
    pre = [sum(n[:i]) for i in range(8)]
    d = [pre[x] - 40 * x + 64 for x in range(8)]
    assert all(0 <= t < 256 for t in d)
    D = sum(d[x] << (8 * x) for x in range(8)); N = sum(n[x] << (8 * x) for x in range(8))
    a = v.index("    v_and_b32 v1, 15, v0\n")
    b = v.index("    v_mov_b32 v20, 0\n")
    L = []
    A = L.append
    A("s_and_b32 s3, s2, 7")
    A(f"s_mov_b32 s14, 0x{D & 0xffffffff:08x}")
    A(f"s_mov_b32 s15, 0x{D >> 32:08x}")
    A("s_lshl_b32 s3, s3, 3")
    A(f"s_mov_b32 s18, 0x{N & 0xffffffff:08x}")
    A(f"s_mov_b32 s19, 0x{N >> 32:08x}")
    A("s_lshr_b64 s[14:15], s[14:15], s3")
    A("s_lshr_b64 s[18:19], s[18:19], s3")
    A("v_lshrrev_b32 v2, 4, v0")
    A("s_and_b32 s18, s18, 0xff")
    A("s_and_b32 s14, s14, 0xff")
    A("v_cmp_gt_u32 vcc, s18, v2")
    A("s_and_b64 exec, exec, vcc")
    A("s_cbranch_execz L_end")
    A("s_mul_i32 s3, s2, 40")
    A("v_and_b32 v1, 15, v0")
    A("s_add_u32 s3, s3, s14")
    A("s_sub_u32 s3, s3, 64")
    A("s_lshr_b32 s12, s2, 4")
    A("v_lshlrev_b32 v1, 4, v1")
    A("s_mulk_i32 s12, 640")
    A("v_add_u32 v2, s3, v2")
    A("v_lshl_add_u32 v1, v2, 10, v1")
    A("v_subrev_u32 v3, s12, v2")
    A("v_lshlrev_b32 v3, 1, v3")
    v = v[:a] + "".join("    " + l + "\n" for l in L) + v[b:]
    FL = "    global_load_ushort v2, v3, s[6:7]\n"
    if fence == "own":
        v = v.replace("    s_waitcnt vmcnt(2)\n", "    s_waitcnt vmcnt(2)\n" + FL)
        v = v.replace("    s_waitcnt vmcnt(0)\n    v_mul_f32 v20", "    s_waitcnt vmcnt(1)\n    v_mul_f32 v20")
    elif fence == "first":
        v = re.sub(r"s_waitcnt vmcnt\(([0-4])\)", lambda m: f"s_waitcnt vmcnt({int(m.group(1))+1})", v)
        v = v.replace("    s_waitcnt vmcnt(5)\n", "    s_waitcnt vmcnt(5)\n" + FL, 1)
    elif fence == "bar":
        v = re.sub(r"s_waitcnt vmcnt\((\d)\)", lambda m: f"s_waitcnt vmcnt({int(m.group(1))+1})", v)
        k = "    s_mov_b32 s16, 0xffff0000\n"
        v = v.replace(k, k + "    s_barrier\n" + FL)
    lines = v.split("\n")
    st = [l for l in lines if "global_store_dwordx4" in l]
    lines = [l for l in lines if "global_store_dwordx4" not in l]
    i = next(k for k, l in enumerate(lines) if ";@T4" in l)
    lines[i:i] = ["    s_waitcnt vmcnt(0)"] + st
    return "\n".join(lines), waves
if __name__ == "__main__":
    o = "var/"
    W = {"0": [40]*8, "1": [42]*4 + [38]*4, "2": [44]*4 + [36]*4, "3": [44, 44, 40, 40, 36, 38, 38, 40], "r": [38]*4 + [42]*4, "4": [41,41,41,41,36,40,40,40]}
    for k, n in W.items():
        for f in ("first", "bar"):
            v, w = gen9(n, f, waves=11)
            open(o + f"z_{k}{f[0]}.s", "w").write(strip(pad(v)))
```

```python
import re
def rep(v, a, b, n=1):
    assert a in v, a
    return v.replace(a, b, n)
def gen23(ldf=""):
    v = open("S_2.s").read()
    v = rep(v, "    s_cselect_b32 s13, 0, 8\n", "    s_cselect_b32 s13, 41, 33\n")
    v = rep(v, "    v_cmp_gt_u32 vcc, s13, v2\n    s_nor_b32 s12, s2, 7\n    s_cbranch_vccnz L_end\n    s_add_u32 s3, s3, s12\n",
               "    v_cmpx_gt_u32 vcc, s13, v2\n    s_add_u32 s12, s2, 7\n    s_cbranch_execz L_end\n    s_andn2_b32 s12, s12, 7\n    s_sub_u32 s3, s3, s12\n")
    v = rep(v, "    s_cmpk_lt_u32 s17, 128\n    v_mov_b32 v56, 0x39a7c5ac\n    v_mov_b32 v57, 0\n",
               "    s_sub_u32 s13, s13, 33\n    s_lshl_b32 s13, s13, 4\n    s_cmp_lt_u32 s17, s13\n")
    v = rep(v, "    v_pk_fma_f32 v[56:57], v[24:25], v[24:25], v[56:57]\n", "    v_pk_mul_f32 v[56:57], v[24:25], v[24:25]\n")
    v = rep(v, "    v_max_f32 v56, 0x3ba7c5ac, v56\n", "    v_max_f32 v56, 0, v56\n    v_add_f32 v56, 0x3ba7c5ac, v56\n")
    v = rep(v, "    v_rsq_f32 v56, v56\n    s_waitcnt vmcnt(1)\n", "    v_rsq_f32 v56, v56\n")
    v = rep(v, "    v_add_f32 v56, v56, v57\n    s_nop 0\n", "    v_add_f32 v56, v56, v57\n    s_waitcnt vmcnt(1)\n")
    if ldf:
        v = re.sub(r"(global_load_dwordx4 .*offset:\d+) *", lambda m: m.group(1) + " " + ldf, v)
    return v
open("Z_p.s", "w").write(gen23())
open("Z_n.s", "w").write(gen23("nt"))
```
